```python
import torch

def _softmax(x, axis=-1):
    return torch.softmax(x, dim=axis)
def _gelu(x):
    return torch.nn.functional.gelu(x, approximate="tanh")
def _silu(x):
    return torch.nn.functional.silu(x)
def _sigmoid(x):
    return torch.sigmoid(x)
def _layernorm(x, axis=-1, eps=1e-5):
    m = x.mean(dim=axis, keepdim=True)
    v = x.var(dim=axis, keepdim=True, unbiased=False)
    return (x - m) / torch.sqrt(v + eps)
def _scatter_add(tgt, idx, src, axis=0):
    return tgt.clone().index_add_(axis, idx, src)
def _segment_sum(src, seg, n):
    out = torch.zeros((n,) + src.shape[1:], dtype=src.dtype)
    return out.index_add_(0, seg, src)
def _pad(x, pw):
    flat = tuple(v for pair in reversed(pw) for v in pair)
    return torch.nn.functional.pad(x, flat)

kernel_name = 'standalone__glu_gated_glu__sampling'

def setup_inputs():

    _w = (lambda a: (lambda t: t.to(torch.bfloat16) if t.is_floating_point() else t)(torch.as_tensor(a)))
    B, S, D, F = 8, 8, 1024, 3584
    return {
        "x": _w((lambda *s: torch.randn(*s, dtype=torch.bfloat16) * 0.1)(B, S, D)),
        "w_gate": _w((lambda *s: torch.randn(*s, dtype=torch.bfloat16) * 0.1)(D, F)),
        "w_up": _w((lambda *s: torch.randn(*s, dtype=torch.bfloat16) * 0.05)(D, F)),
        "w_down": _w((lambda *s: torch.randn(*s, dtype=torch.bfloat16) * 0.05)(F, D)),
    }

def reference(x, w_gate, w_up, w_down):
    g = torch.einsum("bsd,df->bsf", x, w_gate)
    u = torch.einsum("bsd,df->bsf", x, w_up)
    h = _sigmoid(g) * u
    return torch.einsum("bsf,fd->bsd", h, w_down)
```

```python
import sys

class Opt:
    D = 3
    nt_w = True
    nt_wd = True
    nt_x = False
    stamps = False
    pf_wd = 0
    pf_code = False
    chk_iter = 14

def gen(o):
    R = o.D + 2
    SLOT = 12288
    RING = 0
    RINGB = R * SLOT
    WD = RINGB
    LDS = WD + 57344
    XB = 0
    SU_BYTES = 16 * 56 * 1024
    P_BASE = SU_BYTES
    WS_BYTES = SU_BYTES + 2097152
    STAMP_BASE = 4 << 20
    L = []
    def e(s=""):
        L.append(s)
    def lab(s):
        L.append(s + ":")
    ntw = " nt" if o.nt_w else ""
    ntwd = " nt" if o.nt_wd else ""
    ntx = " nt" if o.nt_x else ""

    sC, sMH, sJ, sW, sMT, sHI = "s8", "s9", "s10", "s11", "s12", "s13"
    sN, sRD, sWR, sOW, sOX, sT = "s14", "s15", "s16", "s17", "s18", "s19"
    SX, SWT, SWD, SWS, SOUT, SDBG = "s[20:23]", "s[24:27]", "s[28:31]", "s[32:35]", "s[36:39]", "s[40:43]"
    sMASK, sSUG, sPG, sT1, sT2, sT3 = "s44", "s45", "s46", "s47", "s48", "s49"
    sWREND, sMAT, sTT, sBIG, sSUST = "s50", "s51", "s52", "s53", "s54"
    sOWD, sK1, sK2, sPAT = "s55", "s56", "s57", "s58"
    STAMP0 = 60
    nstamp = [0]
    stamp_names = []
    def stamp(name):
        if not o.stamps:
            return
        k = stamp_names.index(name) if name in stamp_names else None
        if k is None:
            stamp_names.append(name)
            k = len(stamp_names) - 1
        r = STAMP0 + 2 * k
        assert r + 1 < 96
        e(f"  s_memtime s[{r}:{r+1}]")
        e("  s_waitcnt lgkmcnt(0)")

    vL = "v1"
    vW0, vW1, vX = "v2", "v3", "v4"
    vWr0, vWr1, vXr0, vXr1 = "v5", "v6", "v7", "v8"
    vA0, vA1, vA2, vA3 = "v9", "v10", "v11", "v12"
    vCHK = "v13"
    vT0, vT1, vT2, vT3 = "v14", "v15", "v16", "v17"
    ACC = 20
    WF = 28
    XF = 44
    vWdD, vSU, vSUst, vP, vXW, vXR = "v52", "v53", "v54", "v55", "v56", "v57"
    vB = ["v58", "v59", "v60", "v61"]
    vMX = "v62"
    vG = "v63"
    ACC2 = 64
    H = 80
    TMP = 88
    SUF = 96
    BF = 152
    NBF = 3
    NV = 200

    def vr(b, n):
        return f"v[{b}:{b+n-1}]"

    e(f"; @launch grid=(256,1,1) block=(256,1,1) lds={LDS}")
    e('.amdgcn_target "amdgcn-amd-amdhsa--gfx950"')
    e(".text")
    K = "standalone__glu_gated_glu__sampling_kernel"
    e(f".globl {K}")
    e(".p2align 8")
    e(f".type {K},@function")
    lab(K)
    e("  s_cmp_ge_u32 s2, 256")
    e("  s_cbranch_scc1 L_end")
    if o.stamps:
        e("  s_memrealtime s[96:97]")
    stamp("entry")
    e("  s_load_dwordx2 s[20:21], s[0:1], 0")
    e("  s_load_dwordx4 s[4:7], s[0:1], 8")
    e("  s_load_dwordx2 s[28:29], s[0:1], 24")
    e("  s_load_dwordx2 s[36:37], s[0:1], 32")
    e("  s_load_dwordx2 s[40:41], s[0:1], 40")
    e("  s_load_dwordx2 s[32:33], s[0:1], 48")
    e("  v_lshrrev_b32 v14, 6, v0")
    e(f"  v_and_b32 {vL}, 63, v0")
    e(f"  s_and_b32 {sC}, s2, 7")
    e(f"  v_readfirstlane_b32 {sW}, v14")
    e(f"  s_bfe_u32 {sMH}, s2, 0x10003")
    e(f"  s_lshr_b32 {sJ}, s2, 4")
    e(f"  s_mov_b32 s22, 131072")
    e(f"  s_mov_b32 s23, 0x20000")
    e(f"  s_mov_b32 s26, 7340032")
    e(f"  s_mov_b32 s27, 0x20000")
    e(f"  s_mov_b32 s30, 7340032")
    e(f"  s_mov_b32 s31, 0x20000")
    e(f"  s_mov_b32 s34, {WS_BYTES}")
    e(f"  s_mov_b32 s35, 0x20000")
    e(f"  s_mov_b32 s38, 131072")
    e(f"  s_mov_b32 s39, 0x20000")
    e(f"  s_mov_b32 {sPAT}, 0")
    e(f"  s_mov_b32 s42, 256")
    e(f"  s_mov_b32 s43, 0x20000")
    e(f"  s_and_b32 {sMT}, {sW}, 1")
    e(f"  s_lshr_b32 {sHI}, {sW}, 1")
    e(f"  s_cmp_ge_u32 {sJ}, 14")
    e("  s_cbranch_scc1 L_spare")

    e(f"  s_cmp_ge_u32 {sJ}, 7")
    e(f"  s_cselect_b32 {sMAT}, 1, 0")
    e(f"  s_cselect_b32 {sT}, 7, 0")
    e(f"  s_sub_u32 {sTT}, {sJ}, {sT}")
    e(f"  v_lshrrev_b32 {vT0}, 3, {vL}")
    e(f"  v_and_b32 {vT1}, 7, {vL}")
    e(f"  v_bfe_u32 {vT2}, {vL}, 4, 1")
    e(f"  v_lshlrev_b32 {vT2}, 1, {vT2}")
    e(f"  v_xor_b32 {vT2}, {vT1}, {vT2}")
    e(f"  v_lshlrev_b32 {vT2}, 4, {vT2}")
    e(f"  s_lshl_b32 {sT}, {sW}, 4")
    e(f"  v_add_u32 {vT3}, {sT}, {vT0}")
    e(f"  v_mul_u32_u24 {vT3}, 7168, {vT3}")
    e(f"  v_add_u32 {vW0}, {vT3}, {vT2}")
    e(f"  v_xor_b32 {vT2}, 64, {vT2}")
    e(f"  v_add_u32 {vT3}, 57344, {vT3}")
    e(f"  v_add_u32 {vW1}, {vT3}, {vT2}")
    e(f"  s_lshl_b32 {sT}, {sW}, 2")
    e(f"  v_lshrrev_b32 {vT2}, 4, {vL}")
    e(f"  v_add_u32 {vT2}, {sT}, {vT2}")
    e(f"  v_and_b32 {vT2}, 7, {vT2}")
    e(f"  v_xor_b32 {vT2}, {vT1}, {vT2}")
    e(f"  v_lshlrev_b32 {vT2}, 4, {vT2}")
    e(f"  s_lshl_b32 {sT}, {sMH}, 5")
    e(f"  s_lshl_b32 {sT1}, {sW}, 3")
    e(f"  s_add_u32 {sT}, {sT}, {sT1}")
    e(f"  v_add_u32 {vT3}, {sT}, {vT0}")
    e(f"  v_lshl_add_u32 {vX}, {vT3}, 11, {vT2}")
    e(f"  s_mul_i32 {sOW}, {sC}, 896")
    e(f"  s_lshl_b32 {sT}, {sTT}, 7")
    e(f"  s_add_u32 {sOW}, {sOW}, {sT}")
    e(f"  s_mov_b32 {sOX}, 0")
    e(f"  s_mul_i32 {sWR}, {sW}, 3072")
    if RING:
        e(f"  s_add_u32 {sWR}, {sWR}, {RING}")
    e(f"  s_add_u32 {sWREND}, {sWR}, {RINGB}")
    e(f"  s_mov_b32 {sBIG}, 0x20000")
    e(f"  s_mov_b32 {sN}, 0")
    e(f"  s_cmp_eq_u32 {sMAT}, 0")
    e("  s_waitcnt lgkmcnt(0)")
    e("  s_cselect_b32 s24, s4, s6")
    e("  s_cselect_b32 s25, s5, s7")
    stamp("kernarg")

    def patience(label):
        e(f"  s_add_u32 {sPAT}, {sPAT}, 1")
        e(f"  s_cmp_gt_u32 {sPAT}, 0x8000")
        e(f"  s_cbranch_scc1 {label}")

    def issue_block(tail):
        e(f"  s_mov_b32 m0, {sWR}")
        if tail:
            e(f"  s_cmp_lt_u32 {sN}, 16")
            e(f"  s_cselect_b32 {sT}, {sOX}, {sBIG}")
        else:
            e(f"  s_mov_b32 {sT}, {sOX}")
        e(f"  buffer_load_dwordx4 {vW0}, {SWT}, {sOW} offen{ntw} lds")
        e(f"  s_add_u32 m0, m0, 1024")
        e(f"  s_add_u32 {sOX}, {sOX}, 128")
        e(f"  buffer_load_dwordx4 {vW1}, {SWT}, {sOW} offen{ntw} lds")
        e(f"  s_add_u32 m0, m0, 1024")
        e(f"  s_add_u32 {sOW}, {sOW}, 458752")
        e(f"  buffer_load_dwordx4 {vX}, {SX}, {sT} offen{ntx} lds")
        e(f"  s_add_u32 {sWR}, {sWR}, {SLOT}")
        e(f"  s_cmp_ge_u32 {sWR}, {sWREND}")
        e(f"  s_cselect_b32 {sT}, {RINGB}, 0")
        e(f"  s_sub_u32 {sWR}, {sWR}, {sT}")

    lab("L_pro")
    issue_block(False)
    e(f"  s_add_u32 {sN}, {sN}, 1")
    e(f"  s_cmp_lt_u32 {sN}, {o.D}")
    e("  s_cbranch_scc1 L_pro")

    def common_addr():
        e(f"  v_lshrrev_b32 {vT0}, 3, {vL}")
        e(f"  v_and_b32 {vT1}, 7, {vL}")
        e(f"  v_bfe_u32 {vT2}, {vL}, 4, 2")
        e(f"  v_lshlrev_b32 {vT2}, 1, {vT2}")
        e(f"  v_xor_b32 {vT2}, {vT1}, {vT2}")
        e(f"  v_lshlrev_b32 {vT2}, 4, {vT2}")
        e(f"  v_lshl_add_u32 {vWdD}, {vT0}, 11, {vT2}")
        e(f"  s_lshl_b32 {sT}, {sMT}, 11")
        e(f"  v_lshlrev_b32 {vG}, 4, {vL}")
        e(f"  v_add_u32 {vSU}, {sT}, {vG}")
        e(f"  v_lshrrev_b32 {vT0}, 2, {vL}")
        e(f"  v_lshlrev_b32 {vT0}, 7, {vT0}")
        e(f"  v_bfe_u32 {vT1}, {vL}, 3, 2")
        e(f"  s_lshl_b32 {sT}, {sHI}, 1")
        e(f"  v_xor_b32 {vT1}, {sT}, {vT1}")
        e(f"  v_lshl_add_u32 {vT0}, {vT1}, 5, {vT0}")
        e(f"  v_and_b32 {vT1}, 3, {vL}")
        e(f"  v_lshl_add_u32 {vT0}, {vT1}, 3, {vT0}")
        e(f"  s_mul_i32 {sT}, {sHI}, 28672")
        e(f"  s_add_u32 {sT}, {sT}, {WD}")
        e(f"  v_add_u32 {vB[0]}, {sT}, {vT0}")
        e(f"  v_xor_b32 {vB[1]}, 32, {vB[0]}")
        e(f"  v_xor_b32 {vB[2]}, 64, {vB[0]}")
        e(f"  v_xor_b32 {vB[3]}, 96, {vB[0]}")
        e(f"  v_lshrrev_b32 {vT0}, 4, {vL}")
        e(f"  s_lshl_b32 {sT}, {sMT}, 2")
        e(f"  v_add_u32 {vT0}, {sT}, {vT0}")
        e(f"  v_lshlrev_b32 {vT0}, 13, {vT0}")
        e(f"  v_and_b32 {vT1}, 15, {vL}")
        e(f"  v_lshl_add_u32 {vT0}, {vT1}, 4, {vT0}")
        e(f"  s_lshl_b32 {sT}, {sHI}, 9")
        e(f"  v_add_u32 {vP}, {sT}, {vT0}")
        e(f"  s_lshl_b32 {sT}, {sW}, 11")
        if XB:
            e(f"  s_add_u32 {sT}, {sT}, {XB}")
        e(f"  v_add_u32 {vXW}, {sT}, {vG}")
        e(f"  v_xor_b32 {vXR}, 4096, {vXW}")
        e(f"  s_lshl_b32 {sT}, {sC}, 1")
        e(f"  s_add_u32 {sT}, {sT}, {sMH}")
        e(f"  s_mul_i32 {sSUG}, {sT}, 57344")
        e(f"  s_lshl_b32 {sT}, {sMH}, 4")
        e(f"  s_add_u32 {sT}, {sT}, {sJ}")
        e(f"  s_lshl_b32 {sT}, {sT}, 16")
        e(f"  s_add_u32 {sPG}, {sT}, {P_BASE}")
        e(f"  s_mul_i32 {sOWD}, {sC}, 917504")
        e(f"  s_lshl_b32 {sT}, {sJ}, 7")
        e(f"  s_add_u32 {sOWD}, {sOWD}, {sT}")
        e(f"  s_mul_i32 {sT}, {sW}, {14 * 16384}")
        e(f"  s_add_u32 {sOWD}, {sOWD}, {sT}")
        e(f"  s_mov_b32 {sMASK}, 0xffff0000")

    common_addr()
    e(f"  v_lshrrev_b32 {vT0}, 5, {vL}")
    e(f"  v_mul_u32_u24 {vT0}, 3072, {vT0}")
    e(f"  v_bfe_u32 {vT1}, {vL}, 4, 1")
    e(f"  v_lshl_add_u32 {vT0}, {vT1}, 10, {vT0}")
    e(f"  v_bfe_u32 {vT1}, {vL}, 2, 2")
    e(f"  v_lshl_add_u32 {vT0}, {vT1}, 7, {vT0}")
    e(f"  v_bfe_u32 {vT1}, {vL}, 3, 2")
    e(f"  s_lshl_b32 {sT}, {sHI}, 1")
    e(f"  v_xor_b32 {vT1}, {sT}, {vT1}")
    e(f"  v_lshl_add_u32 {vT0}, {vT1}, 5, {vT0}")
    e(f"  v_and_b32 {vT1}, 3, {vL}")
    e(f"  v_lshl_add_u32 {vWr0}, {vT1}, 3, {vT0}")
    if RING:
        e(f"  v_add_u32 {vWr0}, {RING}, {vWr0}")
    e(f"  v_xor_b32 {vWr1}, 32, {vWr0}")
    e(f"  v_bfe_u32 {vT0}, {vL}, 3, 1")
    e(f"  s_lshl_b32 {sT}, {sMT}, 1")
    e(f"  v_add_u32 {vT0}, {sT}, {vT0}")
    e(f"  v_mul_u32_u24 {vT0}, 3072, {vT0}")
    e(f"  v_and_b32 {vT1}, 7, {vL}")
    e(f"  v_lshl_add_u32 {vT0}, {vT1}, 7, {vT0}")
    e(f"  v_lshrrev_b32 {vT1}, 4, {vL}")
    e(f"  v_bfe_u32 {vT2}, {vL}, 1, 3")
    e(f"  v_xor_b32 {vT1}, {vT1}, {vT2}")
    e(f"  v_lshl_add_u32 {vT0}, {vT1}, 4, {vT0}")
    e(f"  v_add_u32 {vXr0}, {RING + 2048}, {vT0}")
    e(f"  v_xor_b32 {vXr1}, 64, {vXr0}")
    for k in range(8):
        e(f"  v_mov_b32 v{ACC + k}, 0")
    e(f"  s_lshl_b32 {sT}, {sTT}, 1")
    e(f"  s_add_u32 {sT}, {sT}, {sHI}")
    e(f"  s_lshl_b32 {sT}, {sT}, 2")
    e(f"  s_lshl_b32 {sT1}, {sMT}, 1")
    e(f"  s_add_u32 {sT}, {sT}, {sT1}")
    e(f"  s_add_u32 {sT}, {sT}, {sMAT}")
    e(f"  s_lshl_b32 {sT}, {sT}, 10")
    e(f"  s_add_u32 {sSUST}, {sSUG}, {sT}")
    e(f"  s_mov_b32 {sRD}, 0")

    lab("L_main")
    issue_block(True)
    e(f"  s_cmp_eq_u32 {sN}, {o.chk_iter}")
    e("  s_cbranch_scc0 L_nochk")
    e(f"  buffer_load_dword {vCHK}, off, {SDBG}, 0 sc1")
    lab("L_nochk")
    e(f"  v_add_u32 {vA0}, {sRD}, {vWr0}")
    e(f"  v_add_u32 {vA1}, {sRD}, {vWr1}")
    e(f"  v_add_u32 {vA2}, {sRD}, {vXr0}")
    e(f"  v_add_u32 {vA3}, {sRD}, {vXr1}")
    e(f"  s_waitcnt vmcnt({3 * o.D})")
    e("  s_barrier")
    def wf(s, t):
        return WF + (s * 2 + t) * 4
    for s in range(2):
        e(f"  ds_read_b128 {vr(XF + 4 * s, 4)}, {vA2 if s == 0 else vA3}")
        for t in range(2):
            for h in range(2):
                e(f"  ds_read_b64_tr_b16 {vr(wf(s, t) + 2 * h, 2)}, {vA0 if t == 0 else vA1} offset:{6144 * s + 512 * h}")
    e(f"  s_add_u32 {sRD}, {sRD}, {SLOT}")
    e(f"  s_cmp_ge_u32 {sRD}, {RINGB}")
    e(f"  s_cselect_b32 {sT}, {RINGB}, 0")
    e(f"  s_sub_u32 {sRD}, {sRD}, {sT}")
    e(f"  s_add_u32 {sN}, {sN}, 1")
    e(f"  s_cmp_lt_u32 {sN}, {16 + o.D}")
    waits = [7, 5, 2, 0]
    idx = 0
    for s in range(2):
        for t in range(2):
            e(f"  s_waitcnt lgkmcnt({waits[idx]})")
            idx += 1
            e(f"  v_mfma_f32_16x16x32_bf16 {vr(ACC + 4 * t, 4)}, {vr(wf(s, t), 4)}, {vr(XF + 4 * s, 4)}, {vr(ACC + 4 * t, 4)}")
    e("  s_cbranch_scc1 L_main")
    stamp("p1loop")
    e("  s_waitcnt vmcnt(0)")
    lab("L_chk")
    e(f"  v_cmp_gt_u32 vcc, 32, {vCHK}")
    e("  s_nop 4")
    e("  s_cbranch_vccz L_chkok")
    patience("L_chkok")
    e("  s_sleep 2")
    e(f"  buffer_load_dword {vCHK}, off, {SDBG}, 0 sc1")
    e("  s_waitcnt vmcnt(0)")
    e("  s_branch L_chk")
    lab("L_chkok")
    e("  s_nop 7")
    E = TMP
    e(f"  s_cmp_eq_u32 {sMAT}, 0")
    for k in range(4):
        e(f"  v_cvt_pk_bf16_f32 v{E + k}, v{ACC + 2 * k}, v{ACC + 2 * k + 1}")
    e("  s_cbranch_scc0 L_nosig")
    e(f"  s_mov_b32 {sT}, 0xbfb8aa3b")
    e(f"  s_mov_b32 {sMASK}, 0xffff0000")
    for k in range(4):
        e(f"  v_lshlrev_b32 v{ACC + 2 * k}, 16, v{E + k}")
        e(f"  v_and_b32 v{ACC + 2 * k + 1}, {sMASK}, v{E + k}")
    for k in range(8):
        e(f"  v_mul_f32 v{ACC + k}, {sT}, v{ACC + k}")
    for k in range(8):
        e(f"  v_exp_f32 v{ACC + k}, v{ACC + k}")
    for k in range(8):
        e(f"  v_add_f32 v{ACC + k}, 1.0, v{ACC + k}")
    for k in range(8):
        e(f"  v_rcp_f32 v{ACC + k}, v{ACC + k}")
    e("  s_nop 0")
    for k in range(4):
        e(f"  v_cvt_pk_bf16_f32 v{E + k}, v{ACC + 2 * k}, v{ACC + 2 * k + 1}")
    lab("L_nosig")
    for k in range(4):
        e(f"  v_min_u32 v{E + k}, -2, v{E + k}")
    e(f"  buffer_store_dwordx4 {vr(E, 4)}, {vG}, {SWS}, {sSUST} offen sc1")
    stamp("sustore")
    e("  s_branch L_p2")

    lab("L_spare")
    e(f"  s_lshl_b32 {sT}, {sC}, 2")
    e(f"  s_lshl_b32 {sT1}, {sMH}, 1")
    e(f"  s_add_u32 {sT}, {sT}, {sT1}")
    e(f"  s_add_u32 {sT}, {sT}, {sJ}")
    e(f"  s_sub_u32 {sT}, {sT}, 14")
    e(f"  s_mul_i32 {sT2}, {sT}, 94208")
    e(f"  s_mul_i32 {sT1}, {sW}, 23552")
    e(f"  s_add_u32 {sT2}, {sT2}, {sT1}")
    e(f"  v_lshlrev_b32 {vG}, 4, {vL}")
    for k in range(4):
        e(f"  v_mov_b32 v{TMP + k}, -1")
    e(f"  s_mov_b32 {sN}, 0")
    e("  s_waitcnt lgkmcnt(0)")
    stamp("kernarg")
    lab("L_reset")
    e(f"  buffer_store_dwordx4 {vr(TMP, 4)}, {vG}, {SWS}, {sT2} offen sc1")
    e(f"  s_add_u32 {sT2}, {sT2}, 1024")
    e(f"  s_add_u32 {sN}, {sN}, 1")
    e(f"  s_cmp_lt_u32 {sN}, 23")
    e("  s_cbranch_scc1 L_reset")
    e("  s_waitcnt vmcnt(0)")
    e("  s_barrier")
    e(f"  s_cmp_eq_u32 {sW}, 0")
    e("  s_cbranch_scc0 L_noatom")
    e(f"  v_mov_b32 {vT0}, 1")
    e("  s_mov_b64 exec, 1")
    e(f"  buffer_atomic_add {vT0}, off, {SDBG}, 0 sc1")
    e("  s_mov_b64 exec, -1")
    lab("L_noatom")
    common_addr()
    stamp("p1loop")
    lab("L_chk2")
    e(f"  buffer_load_dword {vCHK}, off, {SDBG}, 0 sc1")
    e("  s_waitcnt vmcnt(0)")
    e(f"  v_cmp_gt_u32 vcc, 32, {vCHK}")
    e("  s_nop 4")
    e("  s_cbranch_vccz L_chk2ok")
    patience("L_chk2ok")
    e("  s_sleep 8")
    e("  s_branch L_chk2")
    lab("L_chk2ok")
    stamp("sustore")

    lab("L_p2")
    e(f"  s_mul_i32 {sT}, {sW}, {14 * 1024}")
    e(f"  s_add_u32 m0, {sT}, {WD}")
    e(f"  s_movk_i32 {sK1}, 1024")
    e(f"  s_movk_i32 {sK2}, 16384")
    for n in range(14):
        e(f"  buffer_load_dwordx4 {vWdD}, {SWD}, {sOWD} offen{ntwd} lds")
        if n < 13:
            e(f"  s_add_u32 m0, m0, {sK1}")
            e(f"  s_add_u32 {sOWD}, {sOWD}, {sK2}")
    e(f"  s_mul_i32 {sT}, {sHI}, 28672")
    e(f"  s_add_u32 {sT1}, {sSUG}, {sT}")
    def su(i, m):
        return SUF + (i * 2 + m) * 4
    def su_loads():
        e(f"  s_mov_b32 {sT2}, {sT1}")
        for i in range(7):
            e(f"  buffer_load_dwordx4 {vr(su(i, 0), 4)}, {vSU}, {SWS}, {sT2} offen sc1")
            e(f"  buffer_load_dwordx4 {vr(su(i, 1), 4)}, {vSU}, {SWS}, {sT2} offen offset:1024 sc1")
            if i < 6:
                e(f"  s_add_u32 {sT2}, {sT2}, 4096")
    su_loads()
    e("  s_waitcnt vmcnt(14)")
    e("  s_barrier")
    stamp("wdland")
    lab("L_steps")
    def bf(i, u):
        return BF + (i % NBF) * 16 + u * 4
    def b_reads(i):
        for u in range(4):
            for h in range(2):
                e(f"  ds_read_b64_tr_b16 {vr(bf(i, u) + 2 * h, 2)}, {vB[u]} offset:{4096 * i + 2048 * h}")
    b_reads(0)
    for i in range(7):
        if i < 6:
            b_reads(i + 1)
        e(f"  s_waitcnt vmcnt({12 - 2 * i})")
        hb = H + 4 * (i & 1)
        S, U = su(i, 0), su(i, 1)
        if i == 0:
            e(f"  v_max3_u32 {vMX}, v{S}, v{S+1}, v{S+2}")
            e(f"  v_max3_u32 {vMX}, {vMX}, v{S+3}, v{U}")
            e(f"  v_max3_u32 {vMX}, {vMX}, v{U+1}, v{U+2}")
            e(f"  v_max_u32 {vMX}, {vMX}, v{U+3}")
        for k in range(4):
            t = TMP + 4 * (k & 1)
            e(f"  v_lshlrev_b32 v{t}, 16, v{S+k}")
            e(f"  v_lshlrev_b32 v{t+1}, 16, v{U+k}")
            e(f"  v_and_b32 v{t+2}, {sMASK}, v{S+k}")
            e(f"  v_and_b32 v{t+3}, {sMASK}, v{U+k}")
            e(f"  v_mul_f32 v{t}, v{t}, v{t+1}")
            e(f"  v_mul_f32 v{t+2}, v{t+2}, v{t+3}")
            e(f"  v_cvt_pk_bf16_f32 v{hb+k}, v{t}, v{t+2}")
        e(f"  s_waitcnt lgkmcnt({8 if i < 6 else 0})")
        e("  s_nop 0")
        order = [2, 3, 0, 1]
        for u in order:
            c = "0" if i == 0 else vr(ACC2 + 4 * u, 4)
            e(f"  v_mfma_f32_16x16x32_bf16 {vr(ACC2 + 4 * u, 4)}, {vr(hb, 4)}, {vr(bf(i, u), 4)}, {c}")
        if i > 0:
            e(f"  v_max3_u32 {vMX}, {vMX}, v{S}, v{S+1}")
            e(f"  v_max3_u32 {vMX}, {vMX}, v{S+2}, v{S+3}")
            e(f"  v_max3_u32 {vMX}, {vMX}, v{U}, v{U+1}")
            e(f"  v_max3_u32 {vMX}, {vMX}, v{U+2}, v{U+3}")
    e(f"  v_cmp_eq_u32 vcc, -1, {vMX}")
    e("  s_nop 4")
    e("  s_cbranch_vccz L_p2ok")
    patience("L_p2ok")
    e("  s_sleep 4")
    su_loads()
    e("  s_branch L_steps")
    lab("L_p2ok")
    stamp("p2done")
    e(f"  ds_write_b128 {vXW}, {vr(ACC2 + 8, 4)}")
    e(f"  ds_write_b128 {vXW}, {vr(ACC2 + 12, 4)} offset:1024")
    e("  s_waitcnt lgkmcnt(0)")
    e("  s_barrier")
    e(f"  ds_read_b128 {vr(TMP, 4)}, {vXR}")
    e(f"  ds_read_b128 {vr(TMP + 4, 4)}, {vXR} offset:1024")
    e(f"  s_lshl_b32 {sT}, {sC}, 10")
    e(f"  s_add_u32 {sT}, {sT}, {sPG}")
    e("  s_waitcnt lgkmcnt(1)")
    for k in range(4):
        e(f"  v_add_f32 v{ACC2 + k}, v{ACC2 + k}, v{TMP + k}")
    e("  s_waitcnt lgkmcnt(0)")
    for k in range(4):
        e(f"  v_add_f32 v{ACC2 + 4 + k}, v{ACC2 + 4 + k}, v{TMP + 4 + k}")
    for k in range(8):
        e(f"  v_min_u32 v{ACC2 + k}, -2, v{ACC2 + k}")
    e(f"  buffer_store_dwordx4 {vr(ACC2, 4)}, {vP}, {SWS}, {sT} offen sc1")
    e(f"  buffer_store_dwordx4 {vr(ACC2 + 4, 4)}, {vP}, {SWS}, {sT} offen offset:256 sc1")
    stamp("pstore")
    e(f"  s_cmp_eq_u32 {sW}, 0")
    e("  s_cbranch_scc0 L_fin")
    e(f"  s_lshl_b32 {sT}, {sC}, 13")
    e(f"  s_add_u32 {sT}, {sT}, {sPG}")
    e(f"  s_add_u32 {sT1}, {sT}, 4096")
    G = SUF
    lab("L_gather")
    for s in range(8):
        so = sT if s < 4 else sT1
        e(f"  buffer_load_dwordx4 {vr(G + 4 * s, 4)}, {vG}, {SWS}, {so} offen offset:{1024 * (s & 3)} sc1")
    e("  s_waitcnt vmcnt(0)")
    e(f"  v_max3_u32 {vMX}, v{G}, v{G+1}, v{G+2}")
    for k in range(3, 31, 2):
        e(f"  v_max3_u32 {vMX}, {vMX}, v{G+k}, v{G+k+1}")
    e(f"  v_max_u32 {vMX}, {vMX}, v{G+31}")
    e(f"  v_cmp_eq_u32 vcc, -1, {vMX}")
    for k in range(4):
        for a in (0, 2, 4, 6):
            e(f"  v_add_f32 v{G + 4*a + k}, v{G + 4*a + k}, v{G + 4*(a+1) + k}")
    e("  s_cbranch_vccz L_gok")
    patience("L_gok")
    e("  s_sleep 2")
    e("  s_branch L_gather")
    lab("L_gok")
    for k in range(4):
        e(f"  v_add_f32 v{G + k}, v{G + k}, v{G + 8 + k}")
        e(f"  v_add_f32 v{G + 16 + k}, v{G + 16 + k}, v{G + 24 + k}")
    for k in range(4):
        e(f"  v_add_f32 v{G + k}, v{G + k}, v{G + 16 + k}")
    e(f"  v_cvt_pk_bf16_f32 v{TMP}, v{G}, v{G+1}")
    e(f"  v_cvt_pk_bf16_f32 v{TMP+1}, v{G+2}, v{G+3}")
    e(f"  s_lshl_b32 {sT}, {sMH}, 5")
    e(f"  s_lshl_b32 {sT1}, {sC}, 2")
    e(f"  s_add_u32 {sT}, {sT}, {sT1}")
    e(f"  s_lshl_b32 {sT}, {sT}, 11")
    e(f"  s_lshl_b32 {sT1}, {sJ}, 7")
    e(f"  s_add_u32 {sT}, {sT}, {sT1}")
    e(f"  s_add_u32 {sT1}, {sT}, 4096")
    e(f"  v_lshlrev_b32 {vT0}, 1, {vL}")
    e(f"  buffer_store_short v{TMP}, {vT0}, {SOUT}, {sT} offen")
    e(f"  buffer_store_short_d16_hi v{TMP}, {vT0}, {SOUT}, {sT} offen offset:2048")
    e(f"  buffer_store_short v{TMP+1}, {vT0}, {SOUT}, {sT1} offen")
    e(f"  buffer_store_short_d16_hi v{TMP+1}, {vT0}, {SOUT}, {sT1} offen offset:2048")
    stamp("final")
    lab("L_fin")
    if o.stamps:
        e("  s_memrealtime s[98:99]")
        e("  s_waitcnt vmcnt(0) lgkmcnt(0)")
        e(f"  v_mov_b32 {vT0}, 0")
        n = len(stamp_names)
        for k in range(2 * n):
            e(f"  v_writelane_b32 {vT0}, s{STAMP0 + k}, {k}")
        for k in range(4):
            e(f"  v_writelane_b32 {vT0}, s{96 + k}, {40 + k}")
        e(f"  s_lshl_b32 {sT}, s2, 2")
        e(f"  s_add_u32 {sT}, {sT}, {sW}")
        e(f"  s_lshl_b32 {sT}, {sT}, 8")
        e(f"  s_add_u32 {sT}, {sT}, {STAMP_BASE}")
        e(f"  s_mov_b32 s34, {STAMP_BASE + 256 * 1024}")
        e(f"  v_lshlrev_b32 {vT1}, 2, {vL}")
        e(f"  buffer_store_dword {vT0}, {vT1}, {SWS}, {sT} offen")
    lab("L_end")
    e("  s_endpgm")
    e('.section .rodata,"a"')
    e(".p2align 6")
    e(f".amdhsa_kernel {K}")
    e(f"  .amdhsa_next_free_vgpr {NV}")
    e("  .amdhsa_next_free_sgpr 102")
    e(f"  .amdhsa_accum_offset {NV}")
    e("  .amdhsa_group_segment_fixed_size 0")
    e("  .amdhsa_kernarg_size 56")
    e("  .amdhsa_user_sgpr_count 2")
    e("  .amdhsa_user_sgpr_kernarg_segment_ptr 1")
    e("  .amdhsa_system_sgpr_workgroup_id_x 1")
    e("  .amdhsa_float_denorm_mode_32 3")
    e(".end_amdhsa_kernel")
    return "\n".join(L) + "\n", stamp_names

if __name__ == "__main__":
    import argparse
    ap = argparse.ArgumentParser()
    ap.add_argument("-o", default="standalone__glu_gated_glu__sampling.s")
    ap.add_argument("opts", nargs="*")
    a = ap.parse_args()
    o = Opt()
    for kv in a.opts:
        k, v = kv.split("=")
        setattr(o, k, type(getattr(Opt, k))(int(v)))
    s, names = gen(o)
    open(a.o, "w").write(s)
    if names:
        print("stamps:", names)
```
